```python
import torch

def _softmax(x, axis=-1):
    return torch.softmax(x, dim=axis)
def _gelu(x):
    return torch.nn.functional.gelu(x, approximate="tanh")
def _silu(x):
    return torch.nn.functional.silu(x)
def _sigmoid(x):
    return torch.sigmoid(x)
def _layernorm(x, axis=-1, eps=1e-5):
    m = x.mean(dim=axis, keepdim=True)
    v = x.var(dim=axis, keepdim=True, unbiased=False)
    return (x - m) / torch.sqrt(v + eps)
def _scatter_add(tgt, idx, src, axis=0):
    return tgt.clone().index_add_(axis, idx, src)
def _segment_sum(src, seg, n):
    out = torch.zeros((n,) + src.shape[1:], dtype=src.dtype)
    return out.index_add_(0, seg, src)
def _pad(x, pw):
    flat = tuple(v for pair in reversed(pw) for v in pair)
    return torch.nn.functional.pad(x, flat)

kernel_name = 'standalone__kv_cache_quant_int4_int2_kv_with_per_channel_or_per_token_scales__decode'

def setup_inputs():

    _w = (lambda a: (lambda t: t.to(torch.bfloat16) if t.is_floating_point() else t)(torch.as_tensor(a)))
    B = 1
    Sq = 1
    Skv = 32768
    Hq = 32
    Hkv = 32
    Dh = 192
    bits = 4
    G = 64
    if G <= 0 or G >= Skv:
        G = max(1, Skv // 2)
    Skv = (Skv // G) * G
    ngk = Skv // G
    qmax = (1 << bits) - 1
    return {
        "q": _w((lambda *s: torch.randn(*s, dtype=torch.bfloat16) * 1.6)(B, Hq, Sq, Dh)),
        "qk": _w(torch.randint(0, qmax + 1, (B, Hkv, Skv, Dh)).to(torch.int32)),
        "qv": _w(torch.randint(0, qmax + 1, (B, Hkv, Skv, Dh)).to(torch.int32)),
        "k_scales": _w(torch.abs((lambda *s: torch.randn(*s, dtype=torch.bfloat16) * 1.6)(B, Hkv, ngk, Dh)) * 0.05 + 0.02),
        "k_zeros": _w((lambda *s: torch.randn(*s, dtype=torch.bfloat16) * 1.6)(B, Hkv, ngk, Dh) + float(qmax) / 2.0),
        "v_scales": _w(torch.abs((lambda *s: torch.randn(*s, dtype=torch.bfloat16) * 0.05)(B, Hkv, Skv, 1)) * 0.05 + 0.02),
        "v_zeros": _w((lambda *s: torch.randn(*s, dtype=torch.bfloat16) * 0.05)(B, Hkv, Skv, 1) + float(qmax) / 2.0),
    }

def reference(q, qk, qv, k_scales, k_zeros, v_scales, v_zeros):
    B, Hq, Sq, Dh = q.shape
    Hkv, Skv = qk.shape[1], qk.shape[2]
    ngk = k_scales.shape[2]
    G = Skv // ngk
    ks = (lambda x, n, axis: torch.repeat_interleave(x, n, dim=axis))(k_scales, G, axis=2)
    kz = (lambda x, n, axis: torch.repeat_interleave(x, n, dim=axis))(k_zeros, G, axis=2)
    k = ((lambda x, dt: x.to(dt))(qk, q.dtype) - kz) * ks
    v = ((lambda x, dt: x.to(dt))(qv, q.dtype) - v_zeros) * v_scales
    rep = Hq // Hkv
    if rep > 1:
        k = (lambda x, n, axis: torch.repeat_interleave(x, n, dim=axis))(k, rep, axis=1)
        v = (lambda x, n, axis: torch.repeat_interleave(x, n, dim=axis))(v, rep, axis=1)
    scale = float(Dh) ** -0.5
    logits = torch.einsum("bhqd,bhkd->bhqk", q, k) * scale
    p = _softmax(logits, axis=-1)
    o = torch.einsum("bhqk,bhkd->bhqd", p, v)
    return o
```

```python
import argparse
import math
import struct
import sys

NAME = "standalone__kv_cache_quant_int4_int2_kv_with_per_channel_or_per_token_scales__decode"

HEADER = """; Kernarg layout for this problem (80 bytes, ptrs only, base s[0:1]):
"""


class Gen:
    def __init__(self):
        self.lines = []

    def e(self, s):
        self.lines.append("    " + s)

    def lab(self, s):
        self.lines.append(s + ":")

    def c(self, s):
        self.lines.append("    ; " + s)


def lane_of_unit(u, b):
    li = 0
    for s in range(b):
        if (u >> s) & 1:
            li |= 1 << (3 - s)
    return li


def build(a):
    HC, R, NU = 4, a.ring, 16
    NWG = 256
    S = NWG // HC
    LOG2S = S.bit_length() - 1
    b = 4
    NSHP = 512 // S
    NP = 32 // HC
    NSI = NSHP * NP
    LPS = 3 * NU
    RV = a.ringv or R
    RM = max(R, RV)
    RS = 24 if RM <= 24 else 48
    assert RS >= RM
    KX = LPS - RV
    TS = a.ts
    PS = a.ps
    LPSZ = PS.bit_length() - 1
    OWN = a.own
    assert 0 < TS <= NSHP and PS * TS + 2 <= 768 and (OWN or TS < NSHP)
    NVS = NSI - TS
    TRG = a.trg
    assert TRG < KX - 2
    EARLY = TRG < 0
    RP = TRG + LPS if EARLY else TRG
    assert not EARLY or (RP > KX and not OWN)
    CU = a.cu
    NCI = NU // CU
    L = 3 * CU
    E, EQ = (12, 16) if CU >= 8 else (8, 12)
    NRB = 2 if CU == 8 else 4
    assert CU in (4, 8, 16) and (CU == 16 or (a.rota == 0 and PS == 64 and NRB * L >= E + R + 1))
    LF = " nt"
    SC = " sc0 sc1"
    LLF = (" " + a.llf.replace("+", " ")) if a.llf != "inv" else ""
    PFF = (" " + a.pff.replace("+", " ")) if a.pff else ""
    NEG = "0xf149f2ca"

    g = Gen()
    e, lab, c = g.e, g.lab, g.c

    nv = [1]

    def alloc(n, align=1):
        while nv[0] % align:
            nv[0] += 1
        r = nv[0]
        nv[0] += n
        return r

    vKoff = alloc(1)
    vSoff = alloc(1)
    vToff = alloc(1)
    ring = alloc(4 * RS, 4)
    tmp = alloc(8, 4)
    qs = alloc(12, 4)
    av = alloc(12, 4)
    raw = alloc(12, 2)
    if CU < 16:
        avs = [av, alloc(12, 4)]
        raws = [raw] + [alloc(12, 2) for _ in range(NRB - 1)]
        negc2 = alloc(1)
    qraw = alloc(6, 2)
    acc = alloc(12, 4)
    vm = alloc(4, 4)
    vl, vz, negc = vm + 1, vm + 2, vm + 3
    vsr = alloc(1)
    vzr = alloc(1)
    vw = alloc(1)
    vLg = alloc(1)
    vL8 = alloc(1)
    vRq = alloc(1)
    vTa = alloc(1)
    vTk = alloc(1)
    vP = alloc(1)
    vA = alloc(1)
    vB = alloc(1)
    vC0 = alloc(1)
    vC1 = alloc(1)
    vD0 = alloc(1)
    vT0 = alloc(2, 2)
    vT1 = vT0 + 1
    vPP = alloc(2, 2)
    ncs = [alloc(2, 2), alloc(2, 2)]
    vWb = alloc(2, 2)
    vw2 = alloc(1)
    vLw = alloc(1)
    vLr = alloc(1)
    vSl = alloc(1)
    vCn = alloc(1)
    vOne = alloc(1)
    vLv = alloc(1)
    vTS = alloc(3) if a.stamp else 0
    NV_STREAM = nv[0]

    sK, sV, sKS, sKZ, sVS, sVZ, sQ, sWS = 24, 28, 32, 36, 40, 44, 48, 52
    sOUT, sDBG = 56, 60
    sM1, sM0 = 64, 66
    sWave, sG0, sIG, sIK = 68, 69, 70, 71
    sIS, sIT, sIQ, sIC = 72, 73, 74, 75
    sLoop, sFC, sCst, sHead = 76, 77, 78, 79
    sTmp = 80
    sF = 84
    sJ = 92
    sTagS, sDyn, sLgO = 93, 94, 95
    sPos, sHB, sPos0, sDynH = 56, 57, 58, 59
    NSGPR = 102
    sC2, sN2 = 60, 62
    assert CU < 16 and not a.warm
    sIdB = 3
    sCnt1, sWarm, sD, sIdx = 88, 89, 90, 91
    X1, XA = ("s[84:85]", "s[86:87]") if a.warm else ("1", "-1")
    CH = [int(x) for x in a.chunks.split(",")] if a.chunks else [1] * TS
    assert sum(CH) == TS and len(CH) <= 8 and (not OWN or CH == [1] * TS)
    assert not a.lastb or (PS == 64 and not OWN and a.rota == 0)

    def srd(d, p, nbytes):
        e(f"s_mov_b32 s{d}, s{p}")
        e(f"s_and_b32 s{d+1}, s{p+1}, 0xffff")
        e(f"s_mov_b32 s{d+2}, {nbytes}")
        e(f"s_mov_b32 s{d+3}, 0x00020000")

    KN = NAME + "_kernel"
    CNT = 0
    KD, RQ, TGL, RK, DT = CNT + 128, CNT + 132, CNT + 136, CNT + 140, CNT + 144
    LVL = CNT + 148
    TK = CNT + 256
    SLOT = TK + 3072
    SLB = 4096 if a.raw else 1024
    LG = SLOT + NP * SLB
    PRG = LG + NSI * 256 + 256
    lds_min = PRG + 256
    lds_bytes = max(lds_min, a.lds)
    assert lds_bytes <= 163840
    FIN = 0
    REC = 0x100000
    LOC = 0x200000
    STAMP_OFF = 0x1000000
    LGW = 0x1200000
    PCT = 0x1600000
    WSB = 0x1800000
    out = [HEADER.rstrip("\n")]
    out.append(f"; @launch grid=({NWG},1,1) block=({256 if a.fc else 192},1,1) lds={lds_bytes}")
    out.append('.amdgcn_target "amdgcn-amd-amdhsa--gfx950"')
    out.append(".text")
    out.append(f".globl {KN}")
    out.append(".p2align 8")
    out.append(f".type {KN},@function")

    lab(KN)
    e(f"s_cmp_ge_u32 s2, {NWG}")
    e("s_cbranch_scc1 L_end")
    if a.stamp:
        e("s_memrealtime s[96:97]")
    e("s_load_dwordx16 s[4:19], s[0:1], 0")
    e("s_load_dwordx4 s[20:23], s[0:1], 64")
    if a.lastb == 1:
        c("id B: sp = (wg >> 3) & 3, j = (wg >> 5) * 8 + x")
        e(f"s_bfe_u32 s{sTmp}, s2, 0x20003")
        e(f"s_lshr_b32 s{sTmp+1}, s2, 5")
        e(f"s_and_b32 s{sIdB}, s2, 7")
        e(f"s_lshl_b32 s{sTmp}, s{sTmp}, 6")
        e(f"s_lshl_b32 s{sTmp+1}, s{sTmp+1}, 3")
        e(f"s_or_b32 s{sIdB}, s{sIdB}, s{sTmp}")
        e(f"s_or_b32 s{sIdB}, s{sIdB}, s{sTmp+1}")
    elif a.lastb == 2:
        c("id B: sp = (wg >> 3) & 3, j = x * 8 + (wg >> 5)")
        e(f"s_bfe_u32 s{sTmp}, s2, 0x20003")
        e(f"s_and_b32 s{sTmp+1}, s2, 7")
        e(f"s_lshr_b32 s{sIdB}, s2, 5")
        e(f"s_lshl_b32 s{sTmp}, s{sTmp}, 6")
        e(f"s_lshl_b32 s{sTmp+1}, s{sTmp+1}, 3")
        e(f"s_or_b32 s{sIdB}, s{sIdB}, s{sTmp}")
        e(f"s_or_b32 s{sIdB}, s{sIdB}, s{sTmp+1}")
    if a.map == 1:
        c("virtual id: neighbours in a round share an XCD (performance only)")
        e(f"s_and_b32 s{sTmp}, s2, 7")
        e(f"s_bfe_u32 s{sTmp+1}, s2, 0x30003")
        e(f"s_and_b32 s2, s2, 0xc0")
        e(f"s_lshl_b32 s{sTmp}, s{sTmp}, 3")
        e(f"s_or_b32 s2, s2, s{sTmp}")
        e(f"s_or_b32 s2, s2, s{sTmp+1}")
    elif a.map == 2:
        c("virtual id: sp = x & 3, j = (x >> 2) * 32 + wg / 8")
        e(f"s_and_b32 s{sTmp}, s2, 3")
        e(f"s_bfe_u32 s{sTmp+1}, s2, 0x10002")
        e(f"s_lshr_b32 s2, s2, 3")
        e(f"s_lshl_b32 s{sTmp}, s{sTmp}, 6")
        e(f"s_lshl_b32 s{sTmp+1}, s{sTmp+1}, 5")
        e(f"s_or_b32 s2, s2, s{sTmp}")
        e(f"s_or_b32 s2, s2, s{sTmp+1}")
    elif a.map == 3:
        c("virtual id: sp = x >> 1, j = (x & 1) * 32 + wg / 8")
        e(f"s_and_b32 s{sTmp}, s2, 7")
        e(f"s_lshr_b32 s2, s2, 3")
        e(f"s_lshl_b32 s{sTmp}, s{sTmp}, 5")
        e(f"s_or_b32 s2, s2, s{sTmp}")
    elif a.map == 5:
        c("virtual id: sp = x >> 1, j = (wg / 8) * 2 + (x & 1)")
        e(f"s_and_b32 s{sTmp}, s2, 1")
        e(f"s_bfe_u32 s{sTmp+1}, s2, 0x20001")
        e(f"s_lshr_b32 s2, s2, 3")
        e(f"s_lshl_b32 s2, s2, 1")
        e(f"s_lshl_b32 s{sTmp+1}, s{sTmp+1}, 6")
        e(f"s_or_b32 s2, s2, s{sTmp}")
        e(f"s_or_b32 s2, s2, s{sTmp+1}")
    elif a.map == 4:
        c("virtual id: sp = (x & 1) * 2 + (wg >> 7), j = (x >> 1) * 16 + ((wg >> 3) & 15)")
        e(f"s_and_b32 s{sTmp}, s2, 1")
        e(f"s_bfe_u32 s{sTmp+1}, s2, 0x20001")
        e(f"s_lshl_b32 s{sTmp}, s{sTmp}, 7")
        e(f"s_lshl_b32 s{sTmp+1}, s{sTmp+1}, 4")
        e(f"s_or_b32 s{sTmp}, s{sTmp}, s{sTmp+1}")
        e(f"s_bfe_u32 s{sTmp+1}, s2, 0x40003")
        e(f"s_or_b32 s{sTmp}, s{sTmp}, s{sTmp+1}")
        e(f"s_lshr_b32 s2, s2, 7")
        e(f"s_lshl_b32 s2, s2, 6")
        e(f"s_or_b32 s2, s2, s{sTmp}")
    if not a.lastb:
        e(f"s_mov_b32 s{sIdB}, s2")
    e(f"v_lshrrev_b32 v{vA}, 6, v0")
    e(f"v_and_b32 v0, 63, v0")
    e(f"v_readfirstlane_b32 s{sWave}, v{vA}")
    e(f"s_lshr_b32 s{sHead}, s2, {LOG2S}")
    e(f"s_and_b32 s{sJ}, s2, {S-1}")
    e(f"s_mov_b32 s{sM0}, 0xaaaaaaaa")
    e(f"s_mov_b32 s{sM0+1}, 0xaaaaaaaa")
    e(f"s_cmp_eq_u32 s{sWave}, 1")
    e("s_cbranch_scc1 L_service")
    e(f"s_cmp_eq_u32 s{sWave}, 2")
    e("s_cbranch_scc1 L_ticket")
    if a.fc:
        e(f"s_cmp_eq_u32 s{sWave}, 3")
        e("s_cbranch_scc1 L_ctl")
        e("s_mov_b64 vcc, 0")
    if a.prio:
        e(f"s_setprio {a.prio}")
    e(f"v_and_b32 v{vT1}, 15, v0")
    e(f"v_lshrrev_b32 v{vT0}, 4, v0")
    e(f"v_mul_u32_u24 v{vKoff}, 768, v{vT0}")
    e(f"v_lshl_add_u32 v{vKoff}, v{vT1}, 4, v{vKoff}")
    e(f"v_lshlrev_b32 v{vSoff}, 3, v{vT1}")
    c("token of lane: unit u = bitrev4(c), token = 4u + r")
    e(f"v_bfrev_b32 v{vC0}, v{vT1}")
    e(f"v_lshrrev_b32 v{vC0}, 28, v{vC0}")
    if CU == 16:
        e(f"v_lshl_add_u32 v{vToff}, v{vC0}, 2, v{vT0}")
        e(f"v_lshlrev_b32 v{vToff}, 1, v{vToff}")
    else:
        e(f"v_and_b32 v{vC1}, {CU-1}, v{vC0}")
        e(f"v_lshl_add_u32 v{vToff}, v{vC1}, 2, v{vT0}")
        e(f"v_lshlrev_b32 v{vToff}, 1, v{vToff}")
        e(f"v_lshrrev_b32 v{vC0}, {CU.bit_length()-1}, v{vC0}")
        e(f"v_lshl_add_u32 v{vToff}, v{vC0}, {(64*CU*8).bit_length()-1}, v{vToff}")
    c("LDS addresses")
    e(f"v_lshlrev_b32 v{vLw}, 2, v0")
    e(f"v_add_u32 v{vLr}, {LG}, v{vLw}")
    e(f"v_add_u32 v{vLw}, {LG-256}, v{vLw}")
    e(f"v_lshlrev_b32 v{vSl}, 4, v0")
    e(f"v_mov_b32 v{vCn}, {CNT}")
    e(f"v_mov_b32 v{vOne}, 1")
    e(f"v_lshlrev_b32 v{vL8}, 2, v0")
    e(f"v_mov_b32 v{vRq}, 1")
    e(f"v_mov_b32 v{vTa}, {TK+4}")
    c("start position inside a head: pos0 = (sp*A + j) mod 512 ; pool's stealable range")
    e(f"s_mul_i32 s{sPos0}, s{sHead}, {a.rota}")
    e(f"s_and_b32 s{sDyn}, s{sJ}, {512-PS}")
    e(f"s_add_u32 s{sDyn}, s{sDyn}, s{sPos0}")
    e(f"s_add_u32 s{sDyn}, s{sDyn}, {(NSHP-TS)*S}")
    e(f"s_add_u32 s{sPos0}, s{sPos0}, s{sJ}")
    e(f"s_and_b32 s{sPos0}, s{sPos0}, 511")
    e(f"s_lshr_b32 s{sDynH}, s{sIdB}, {LOG2S}")
    e(f"s_lshl_b32 s{sG0}, s{sHead}, 9")
    if a.lastb:
        c("group offset of the static items of the last head phase")
        e(f"s_lshl_b32 s{sD}, s{sDynH}, 9")
        e(f"s_and_b32 s{sTmp}, s{sIdB}, {S-1}")
        e(f"s_add_u32 s{sD}, s{sD}, s{sTmp}")
        e(f"s_sub_u32 s{sD}, s{sD}, s{sG0}")
        e(f"s_sub_u32 s{sD}, s{sD}, s{sJ}")
    e(f"s_add_u32 s{sDynH}, s{sDynH}, {(NP-1)*HC}")
    e(f"s_lshl_b32 s{sDynH}, s{sDynH}, 9")
    if a.warm:
        e("s_mov_b64 s[84:85], 1")
        e("s_mov_b64 s[86:87], -1")
        e(f"s_mov_b32 s{sCnt1}, {NVS-1}")
        e(f"s_mov_b32 s{sWarm}, 0")
    e(f"s_mov_b32 s{sM1}, 0xcccccccc")
    e(f"s_mov_b32 s{sM1+1}, 0xcccccccc")
    cst = (192.0 ** -0.5) * math.log2(math.e)
    cbits = struct.unpack("<I", struct.pack("<f", cst))[0]
    cbits += 100 << 23
    for i in range(2):
        e(f"s_mov_b32 s{sC2+i}, 0x{cbits:08x}")
        e(f"s_mov_b32 s{sN2+i}, 0x80000001")
    e("s_waitcnt lgkmcnt(0)")
    if a.stamp:
        for i in range(3):
            e(f"v_mov_b32 v{vTS+i}, 0")
        e(f"v_writelane_b32 v{vTS+1}, s96, 60")
        e("s_memrealtime s[98:99]")
        e("s_mov_b32 m0, 0")
    srd(sK, 6, 805306368)
    srd(sQ, 4, 12288)
    srd(sKS, 10, 6291456)
    srd(sKZ, 12, 6291456)

    issued = []

    def ld(tag, txt):
        e(txt)
        issued.append(tag)

    def wait_for(tag):
        idx = max(i for i, t in enumerate(issued) if t == tag)
        n = len(issued) - 1 - idx
        assert n <= 63, n
        e(f"s_waitcnt vmcnt({n})")

    NTOT = [(NSI + NVS + 3) * LPS]

    def dyn_setup():
        e(f"s_lshr_b32 s{sTmp+1}, s{sTmp}, {LPSZ}")
        e(f"s_and_b32 s{sTmp}, s{sTmp}, {PS-1}")
        e(f"s_mul_i32 s{sPos}, s{sTmp+1}, {S}")
        e(f"s_add_u32 s{sPos}, s{sPos}, s{sTmp}")
        e(f"s_add_u32 s{sPos}, s{sPos}, s{sDyn}")
        e(f"s_and_b32 s{sPos}, s{sPos}, 511")
        e(f"s_mov_b32 s{sHB}, s{sDynH}")
        e(f"s_add_u32 s{sIG}, s{sHB}, s{sPos}")
        e(f"s_and_b32 s{sLgO}, s{sIdB}, {256-PS}")
        e(f"s_add_u32 s{sLgO}, s{sLgO}, s{sTmp}")
        e(f"s_lshl_b32 s{sLgO}, s{sLgO}, 3")
        e(f"s_add_u32 s{sLgO}, s{sLgO}, s{sTmp+1}")
        e(f"s_lshl_b32 s{sLgO}, s{sLgO}, 8")
        e(f"s_add_u32 s{sLgO}, s{sLgO}, {LGW}")

    def issue(n):
        if n >= NTOT[0]:
            return
        ph = 1 if n >= NSI * LPS else 0
        rem = n - ph * NSI * LPS
        si, k = divmod(rem, LPS)
        dyn = ph == 1 and si >= NVS
        u, j = divmod(k, 3)
        gsi = ph * NSI + si
        def next_item(si_):
            if si_ == 0:
                e(f"s_mov_b32 s{sHB}, s{sG0}")
                e(f"s_mov_b32 s{sPos}, s{sPos0}")
                e(f"s_mov_b32 s{sIC}, {NSHP}")
                e(f"s_add_u32 s{sIG}, s{sHB}, s{sPos}")
                if a.lastb:
                    e(f"s_mov_b32 s{sIdx}, {-(NSI-NSHP)}")
            else:
                e(f"s_add_u32 s{sPos}, s{sPos}, {S}")
                e(f"s_and_b32 s{sPos}, s{sPos}, 511")
                e(f"s_sub_u32 s{sIC}, s{sIC}, 1")
                e(f"s_cmp_eq_u32 s{sIC}, 0")
                e(f"s_cselect_b32 s{sTmp}, {HC*512}, 0")
                e(f"s_cselect_b32 s{sIC}, {NSHP}, s{sIC}")
                e(f"s_add_u32 s{sHB}, s{sHB}, s{sTmp}")
                e(f"s_add_u32 s{sIG}, s{sHB}, s{sPos}")
                if a.lastb:
                    e(f"s_add_u32 s{sIdx}, s{sIdx}, 1")
                    e(f"s_cmp_lt_u32 s{sIdx}, {NSHP-TS}")
                    e(f"s_cselect_b32 s{sTmp}, s{sD}, 0")
                    e(f"s_add_u32 s{sIG}, s{sIG}, s{sTmp}")

        def q_loads(gi):
            e(f"s_lshr_b32 s{sIQ}, s{sIG}, 9")
            e(f"s_mul_i32 s{sIQ}, s{sIQ}, 384")
            for jj in range(3):
                ld(("Q", gi), f"buffer_load_dwordx2 v[{qraw+2*jj}:{qraw+2*jj+1}], v{vSoff}, s[{sQ}:{sQ+3}], s{sIQ} offen offset:{128*jj}")

        def s_loads(tag, rw):
            for jj in range(3):
                ld(tag, f"buffer_load_dwordx2 v[{rw+2*jj}:{rw+2*jj+1}], v{vSoff}, s[{sKS}:{sKS+3}], s{sIS} offen offset:{128*jj}")
            for jj in range(3):
                ld(tag, f"buffer_load_dwordx2 v[{rw+6+2*jj}:{rw+6+2*jj+1}], v{vSoff}, s[{sKZ}:{sKZ+3}], s{sIS} offen offset:{128*jj}")

        def s_first():
            e(f"s_and_b32 s{sTmp}, s{sIG}, 63")
            e(f"s_sub_u32 s{sIS}, s{sIG}, s{sTmp}")
            e(f"s_lshr_b32 s{sTmp}, s{sTmp}, {NCI.bit_length()-1}")
            e(f"s_add_u32 s{sIS}, s{sIS}, s{sTmp}")
            e(f"s_mul_i32 s{sIS}, s{sIS}, 384")

        if CU < 16 and ph == 0:
            if n == 0:
                next_item(0)
                q_loads(0)
                s_first()
                s_loads(("S", 0), raws[0])
            if k == LPS - EQ and si + 1 < NSI:
                next_item(si + 1)
                q_loads(si + 1)
            if (k + E) % L == 0:
                gc = (n + E) // L
                if gc < NSI * NCI:
                    if gc % NCI == 0:
                        s_first()
                    else:
                        e(f"s_add_u32 s{sIS}, s{sIS}, {4*CU*384}")
                    s_loads(("S", gc), raws[gc % NRB])
        if j == 0:
            if u == 0:
                if dyn or (CU < 16 and ph == 0):
                    pass
                else:
                    next_item(si)
                if ph == 0:
                    if CU == 16:
                        q_loads(gsi)
                else:
                    if CU == 16:
                        e(f"s_lshl_b32 s{sIT}, s{sIG}, 7")
                    else:
                        e(f"s_and_b32 s{sTmp}, s{sIG}, 63")
                        e(f"s_mul_i32 s{sTmp}, s{sTmp}, {128 - 8*CU}")
                        e(f"s_lshl_b32 s{sIT}, s{sIG}, 7")
                        e(f"s_sub_u32 s{sIT}, s{sIT}, s{sTmp}")
                    if dyn:
                        ld(("G", gsi), f"buffer_load_dword v{vLg}, v{vL8}, s[{sWS}:{sWS+3}], s{sLgO} offen{SC}")
                    ld(("T", gsi), f"buffer_load_ushort v{vsr}, v{vToff}, s[{sVS}:{sVS+3}], s{sIT} offen")
                    ld(("T", gsi), f"buffer_load_ushort v{vzr}, v{vToff}, s[{sVZ}:{sVZ+3}], s{sIT} offen")
                e(f"s_mul_i32 s{sIK}, s{sIG}, 49152")
                if CU < 16:
                    e(f"s_and_b32 s{sTmp}, s{sIG}, 63")
                    e(f"s_mul_i32 s{sTmp}, s{sTmp}, {49152 - CU*3072}")
                    e(f"s_sub_u32 s{sIK}, s{sIK}, s{sTmp}")
                if ph == 0 and CU == 16:
                    e(f"s_mul_i32 s{sIS}, s{sIG}, 384")
                    s_loads(("S", gsi), raw)
            elif u % CU == 0:
                e(f"s_add_u32 s{sIK}, s{sIK}, {64*CU*3072 - (CU-1)*3072}")
            else:
                e(f"s_add_u32 s{sIK}, s{sIK}, 3072")
        if a.pace and n >= R and k % (3 * a.pu) == 0 and not dyn:
            tau = int(a.pace.split(",")[ph]) * a.pu
            lab(f"L_pc{k}_@")
            e("s_waitcnt lgkmcnt(0)")
            e("s_sub_u32 s5, s6, s4")
            e("s_mul_i32 s5, s5, 800")
            e("s_memrealtime s[6:7]")
            e(f"s_cmp_lt_i32 s5, s{sWave}")
            e(f"s_cbranch_scc1 L_pc{k}_@")
            e(f"s_sub_i32 s5, s5, {a.burst * 8000}")
            e(f"s_max_i32 s{sWave}, s{sWave}, s5")
            e(f"s_add_u32 s{sWave}, s{sWave}, {tau}")
        if a.fc and n >= R and k % a.fcp == 0 and (a.fcd or not dyn):
            idx = max(i for i, t in enumerate(issued) if t == ("U", n - R + a.fc))
            e(f"s_cbranch_vccnz L_th{k}_@")
            lab(f"L_tb{k}_@")
            g.lines.append(f"#OOL L_th{k}_@:")
            g.lines.append(f"#OOL     s_waitcnt vmcnt({len(issued) - 1 - idx})")
            g.lines.append(f"#OOL     s_branch L_tb{k}_@")
        slot = ring + 4 * (n % RS)
        sr = sV if ph else sK
        ld(("U", n), f"buffer_load_dwordx4 v[{slot}:{slot+3}], v{vKoff}, s[{sr}:{sr+3}], s{sIK} offen offset:{256*j}{LF}")

    nxt = [0]

    def advance(n):
        r = RV if n >= NSI * LPS else R
        while nxt[0] <= n + r:
            issue(nxt[0])
            nxt[0] += 1

    def chain(k):
        FULL = "row_mask:0xf bank_mask:0xf"
        early, late = [], []
        for u in range(NU):
            d = k - 3 * u
            if d == 2:
                late.append(f"v_add_f32 v{vP}, v{vPP}, v{vPP+1}")
            if d == 3:
                bm = "0x3" if (u & 1) == 0 else "0xc"
                early.append(f"v_add_f32_dpp v{vA}, v{vP}, v{vP} row_ror:8 row_mask:0xf bank_mask:{bm}")
            if d == 4 and (u & 1):
                if (u & 2) == 0:
                    early.append(f"v_add_f32_dpp v{vB}, v{vA}, v{vA} row_shl:4 row_mask:0xf bank_mask:0x5")
                else:
                    early.append(f"v_add_f32_dpp v{vB}, v{vA}, v{vA} row_shr:4 row_mask:0xf bank_mask:0xa")
            if d == 5 and (u & 3) == 3:
                early.append(f"v_add_f32_dpp v{vC1 if u & 4 else vC0}, v{vB}, v{vB} quad_perm:[2,3,0,1] {FULL}")
            if d == 6 and (u & 7) == 7:
                early.append(f"v_cndmask_b32 v{vC1}, v{vC0}, v{vC1}, s[{sM1}:{sM1+1}]")
            if d == 7 and (u & 7) == 7:
                early.append(f"v_add_f32_dpp v{vC0 if u & 8 else vD0}, v{vC1}, v{vC1} quad_perm:[1,0,3,2] {FULL}")
            if d == 8 and u == 15:
                early.append(f"v_cndmask_b32 v{vD0}, v{vD0}, v{vC0}, s[{sM0}:{sM0+1}]")
                early.append(f"v_mul_f32 v{vD0}, 0x58000000, v{vD0}")
                early.append(f"ds_write_b32 v{vLw}, v{vD0}")
                early.append(f"v_add_u32 v{vLw}, 256, v{vLw}")
        return early, late

    def rowmerge(acc, vm, vl, vz, vT0, vT1, tmp):
        for s in range(b):
            e("s_nop 0")
            e(f"v_add_f32_dpp v{vl}, v{vl}, v{vl} row_ror:{8>>s} row_mask:0xf bank_mask:0xf")
            e(f"v_add_f32_dpp v{vz}, v{vz}, v{vz} row_ror:{8>>s} row_mask:0xf bank_mask:0xf")
        e(f"v_mov_b32 v{vT0}, v{vm}")
        e(f"v_mov_b32 v{vT1}, v{vm}")
        e("s_nop 1")
        e(f"v_permlane32_swap_b32 v{vT0}, v{vT1}")
        e("s_nop 1")
        e(f"v_max_f32 v{vT0}, v{vT0}, v{vT1}")
        e(f"v_mov_b32 v{vT1}, v{vT0}")
        e("s_nop 1")
        e(f"v_permlane16_swap_b32 v{vT0}, v{vT1}")
        e("s_nop 1")
        e(f"v_max_f32 v{vT0}, v{vT0}, v{vT1}")
        e(f"v_sub_f32 v{vT1}, v{vm}, v{vT0}")
        e(f"v_exp_f32 v{vT1}, v{vT1}")
        e(f"v_mov_b32 v{tmp+4}, v{vT0}")
        e(f"v_mul_f32 v{vl}, v{vl}, v{vT1}")
        e(f"v_mul_f32 v{vz}, v{vz}, v{vT1}")
        e(f"v_mul_f32 v{vT1}, 0x58000000, v{vT1}")
        for k in range(12):
            e(f"v_fma_f32 v{acc+k}, v{acc+k}, v{vT1}, -v{vz}")
        e(f"v_mov_b32 v{vT0}, v{vl}")
        e("s_nop 1")
        e(f"v_permlane32_swap_b32 v{vl}, v{vT0}")
        for j in range(3):
            for ee in range(2):
                e(f"v_permlane32_swap_b32 v{acc+4*j+ee}, v{acc+4*j+ee+2}")
        e("s_nop 1")
        e(f"v_add_f32 v{vl}, v{vl}, v{vT0}")
        for j in range(3):
            for ee in range(2):
                e(f"v_add_f32 v{acc+4*j+ee}, v{acc+4*j+ee}, v{acc+4*j+ee+2}")
        e(f"v_mov_b32 v{vT0}, v{vl}")
        e("s_nop 1")
        e(f"v_permlane16_swap_b32 v{vl}, v{vT0}")
        for j in range(3):
            e(f"v_permlane16_swap_b32 v{acc+4*j}, v{acc+4*j+1}")
        e("s_nop 1")
        e(f"v_add_f32 v{tmp+5}, v{vl}, v{vT0}")
        for j in range(3):
            e(f"v_add_f32 v{tmp+j}, v{acc+4*j}, v{acc+4*j+1}")

    def flush(final):
        if a.raw and not final:
            c("dump the raw state; LDS executes a wave's instructions in order; alpha = 0 clears the rest")
            for i in range(3):
                e(f"ds_write_b128 v{vSl}, v[{acc+4*i}:{acc+4*i+3}] offset:{SLOT+1024*i}")
            e(f"ds_write_b128 v{vSl}, v[{vm}:{vm+3}] offset:{SLOT+3072}")
            e(f"s_mov_b64 exec, {X1}")
            e(f"ds_add_u32 v{vCn}, v{vOne}")
            e(f"s_mov_b64 exec, {XA}")
            e(f"v_mov_b32 v{vm}, {NEG}")
            e(f"v_add_u32 v{vSl}, {SLB}, v{vSl}")
            e(f"v_add_u32 v{vCn}, 4, v{vCn}")
            return
        rowmerge(acc, vm, vl, vz, vT0, vT1, tmp)
        if final:
            e(f"v_mov_b32 v{tmp+3}, s{sTagS}")
            e(f"v_mov_b32 v{tmp+6}, s{sTagS}")
            e(f"v_mov_b32 v{tmp+7}, s{sTagS}")
            e(f"v_lshlrev_b32 v{vT1}, 4, v0")
            e(f"s_lshl_b32 s{sTmp}, s{sIdB}, 11")
            e(f"buffer_store_dwordx4 v[{tmp}:{tmp+3}], v{vT1}, s[{sWS}:{sWS+3}], s{sTmp} offen offset:{FIN}{SC}")
            e(f"s_mov_b64 exec, {X1}")
            e(f"buffer_store_dwordx4 v[{tmp+4}:{tmp+7}], v{vT1}, s[{sWS}:{sWS+3}], s{sTmp} offen offset:{FIN+1024}{SC}")
            e(f"s_mov_b64 exec, {XA}")
            return
        e(f"v_cndmask_b32 v{tmp+3}, v{tmp+4}, v{tmp+5}, s[{sM0}:{sM0+1}]")
        e(f"ds_write_b128 v{vSl}, v[{tmp}:{tmp+3}] offset:{SLOT}")
        init_state()
        e("s_waitcnt lgkmcnt(0)")
        e(f"s_mov_b64 exec, {X1}")
        e(f"ds_add_u32 v{vCn}, v{vOne}")
        e(f"s_mov_b64 exec, {XA}")
        e(f"v_add_u32 v{vSl}, 1024, v{vSl}")
        e(f"v_add_u32 v{vCn}, 4, v{vCn}")

    def init_state():
        e(f"v_mov_b32 v{vm}, {NEG}")
        e(f"v_mov_b32 v{vl}, 0")
        e(f"v_mov_b32 v{vz}, 0")
        for k in range(12):
            e(f"v_mov_b32 v{acc+k}, 0")

    def q_ops():
        o = []
        for m in range(6):
            o.append(f"v_lshlrev_b32 v{qs+2*m}, 16, v{qraw+m}")
            o.append(f"v_and_b32 v{qs+2*m+1}, 0xffff0000, v{qraw+m}")
            o.append(f"v_pk_mul_f32 v[{qs+2*m}:{qs+2*m+1}], v[{qs+2*m}:{qs+2*m+1}], s[{sC2}:{sC2+1}]")
        return o

    def s_ops(gc):
        rw, av_, ng_ = raws[gc % NRB], avs[gc & 1], ncs[gc & 1]
        T = f"v[{vT0}:{vT1}]"
        N = f"v[{ng_}:{ng_+1}]"
        o = []
        for m in range(6):
            A = f"v[{av_+2*m}:{av_+2*m+1}]"
            o.append(f"v_lshlrev_b32 v{vT0}, 16, v{rw+m}")
            o.append(f"v_and_b32 v{vT1}, 0xffff0000, v{rw+m}")
            o.append(f"v_pk_mul_f32 {A}, {T}, v[{qs+2*m}:{qs+2*m+1}]")
            o.append(f"v_lshlrev_b32 v{vT0}, 16, v{rw+6+m}")
            o.append(f"v_and_b32 v{vT1}, 0xffff0000, v{rw+6+m}")
            if m == 0:
                o.append(f"v_pk_mul_f32 {N}, {A}, {T}")
            else:
                o.append(f"v_pk_fma_f32 {N}, {A}, {T}, {N}")
        o.append(f"v_pk_mul_f32 {N}, {N}, s[{sN2}:{sN2+1}]")
        return o

    def si_body(ph, si, k0=0):
        gsi = ph * NSI + si
        n0 = gsi * LPS
        dyn = ph == 1 and si >= NVS
        for k in range(k0, LPS):
            n = n0 + k
            u, j = divmod(k, 3)
            slot = ring + 4 * (n % RS)
            t = tmp + 4 * (k & 1)
            lasts = ph == 1 and si == NVS - 1
            if lasts and k == (KX if OWN else max(TRG, 0)):
                c("the service wave repeats the tag once all logits of the head set are published")
                lab("L_tagw")
                e(f"ds_read_b32 v{vTk}, v{vOne} offset:{RK-1}")
                e("s_waitcnt lgkmcnt(0)")
                e(f"v_readfirstlane_b32 s{sTagS}, v{vTk}")
                e(f"s_cmp_eq_u32 s{sTagS}, 0")
                e("s_cbranch_scc1 L_tagw")
                if OWN:
                    e(f"s_and_b32 s{sTmp}, s2, {PS-1}")
                    dyn_setup()
            if EARLY and ph == 1 and si < NVS - 1 and k == RP:
                e(f"s_cmp_eq_u32 s{sLoop}, 1")
                e(f"s_cselect_b64 exec, {X1}, 0")
                e(f"ds_add_u32 v{vOne}, v{vOne} offset:{RQ-1}")
                e(f"s_mov_b64 exec, {XA}")
            if (dyn or (lasts and not OWN)) and k0 == 0:
                x = "" if dyn else "s"
                if k == RP:
                    e(f"s_mov_b64 exec, {X1}")
                    e(f"ds_add_u32 v{vOne}, v{vOne} offset:{RQ-1}")
                    e(f"s_mov_b64 exec, {XA}")
                if k == KX - 2:
                    e(f"ds_read_b32 v{vTk}, v{vTa}")
                if k == KX:
                    e("s_waitcnt lgkmcnt(0)")
                    e(f"v_readfirstlane_b32 s{sTmp}, v{vTk}")
                    e(f"s_cmp_lg_u32 s{sTmp}, -1")
                    e(f"s_cbranch_scc1 L_tkok{x}")
                    lab(f"L_tkw{x}")
                    e(f"ds_read_b32 v{vTk}, v{vTa}")
                    e("s_waitcnt lgkmcnt(0)")
                    e(f"v_readfirstlane_b32 s{sTmp}, v{vTk}")
                    e(f"s_cmp_eq_u32 s{sTmp}, -1")
                    e(f"s_cbranch_scc1 L_tkw{x}")
                    lab(f"L_tkok{x}")
                    e(f"v_add_u32 v{vTa}, 4, v{vTa}")
                    e(f"s_cmp_ge_u32 s{sTmp}, {PS*TS}")
                    e(f"s_cbranch_scc1 L_dtail")
                    dyn_setup()
            if ph == 1 and k == 0:
                c("online softmax update for this item")
                wait_for(("T", gsi))
                e(f"v_lshlrev_b32 v{vsr}, 16, v{vsr}")
                e(f"v_lshlrev_b32 v{vzr}, 16, v{vzr}")
                if not dyn:
                    e("s_waitcnt lgkmcnt(0)")
                src = vLg
                for s in range(b):
                    e(f"v_max_f32_dpp v{vT0}, v{src}, v{src} row_ror:{8>>s} row_mask:0xf bank_mask:0xf")
                    src = vT0
                    if s + 1 < b:
                        e("s_nop 1")
                e(f"v_max_f32 v{vT0}, v{src}, v{vm}")
                e(f"v_sub_f32 v{vT1}, v{vm}, v{vT0}")
                e(f"v_sub_f32 v{vw}, v{vLg}, v{vT0}")
                e(f"v_exp_f32 v{vT1}, v{vT1}")
                e(f"v_exp_f32 v{vw}, v{vw}")
                e(f"v_mov_b32 v{vm}, v{vT0}")
                e(f"v_fma_f32 v{vl}, v{vl}, v{vT1}, v{vw}")
                e(f"v_mul_f32 v{vw}, v{vw}, v{vsr}")
                e(f"v_mul_f32 v{vz}, v{vz}, v{vT1}")
                e(f"v_mul_f32 v{vw2}, 0x71800000, v{vw}")
                e(f"v_fmac_f32 v{vz}, v{vw}, v{vzr}")
                if si + 1 < NVS:
                    e(f"ds_read_b32 v{vLg}, v{vLr}")
                    e(f"v_add_u32 v{vLr}, 256, v{vLr}")
                for kk in range(0, 12, 2):
                    e(f"v_pk_mul_f32 v[{acc+kk}:{acc+kk+1}], v[{acc+kk}:{acc+kk+1}], v[{vT0}:{vT1}] op_sel:[0,1] op_sel_hi:[1,1]")
            if a.stamp and k == 1:
                e("s_memrealtime s[96:97]")
            if a.stamp and k == 3:
                e("s_waitcnt lgkmcnt(0)")
                e(f"v_writelane_b32 v{vTS + (2 if dyn else ph)}, s96, m0")
                e("s_add_u32 m0, m0, 1")
            if ph == 1 and j == 0:
                e(f"v_mov_b32_dpp v{vWb}, v{vw2} row_newbcast:{lane_of_unit(u, b)} row_mask:0xf bank_mask:0xf")
            wait_for(("U", n))
            c_ = "the integer codes are read as fp32 denormals (code * 2^-149), exact for 0 <= code < 2^23"
            if ph == 0:
                av_, ng_ = avs[(k // L) & 1], ncs[(k // L) & 1]
                for h in range(2):
                    ad = ng_ if (j == 0 and h == 0) else vPP
                    e(f"v_pk_fma_f32 v[{vPP}:{vPP+1}], v[{av_+4*j+2*h}:{av_+4*j+2*h+1}], v[{slot+2*h}:{slot+2*h+1}], v[{ad}:{ad+1}]")
            else:
                for h in range(2):
                    A = f"v[{acc+4*j+2*h}:{acc+4*j+2*h+1}]"
                    e(f"v_pk_fma_f32 {A}, v[{vWb}:{vWb+1}], v[{slot+2*h}:{slot+2*h+1}], {A} op_sel_hi:[0,1,1]")
            if a.fc and k0 == 0:
                if k % a.fcr == 2:
                    e("s_waitcnt lgkmcnt(0)")
                    e(f"v_cmp_ne_u32 vcc, 0, v{vLv}")
                if j == 2:
                    e(f"ds_add_u32 v{vL8}, v{vOne} offset:{PRG}")
                if k % a.fcr == 0:
                    e(f"ds_read_b32 v{vLv}, v{vOne} offset:{LVL-1}")
            advance(n)
            if ph == 0:
                e1, l1 = chain(k + LPS)
                e2, l2 = chain(k)
                for op in e1 + e2 + l1 + l2:
                    e(op)
                if LPS - EQ <= k < LPS - E and si + 1 < NSI:
                    ops = q_ops()
                    per = -(-len(ops) // (EQ - E))
                    for op in ops[per * (k - (LPS - EQ)):per * (k - (LPS - EQ) + 1)]:
                        e(op)
                gc = n // L + 1
                pos = k % L - (L - E)
                if pos >= 0 and gc < NSI * NCI:
                    ops = s_ops(gc)
                    per = -(-len(ops) // E)
                    for op in ops[per * pos:per * (pos + 1)]:
                        e(op)
        if ph == 0:
            if si == NSI - 1:
                for k in range(LPS, LPS + 6):
                    e("s_nop 1")
                    for op in chain(k)[0]:
                        e(op)
        elif not dyn:
            e(f"s_sub_u32 s{sFC}, s{sFC}, 1")
            e(f"s_cmp_lg_u32 s{sFC}, 0")
            e(f"s_cbranch_scc1 L_nofl@")
            flush(False)
            e(f"s_mov_b32 s{sFC}, {NSHP}")
            lab("L_nofl@")

    advance(-1)
    srd(sV, 8, 805306368)
    srd(sVS, 14, 2097152)
    srd(sVZ, 16, 2097152)
    srd(sWS, 22, WSB)
    if a.pace:
        e("s_memrealtime s[4:5]")
        e("s_memrealtime s[6:7]")
    e(f"s_mov_b32 s{sFC}, {NSHP}")
    init_state()
    if a.stamp:
        e("s_memrealtime s[96:97]")
        e("s_waitcnt lgkmcnt(0)")
        e(f"v_writelane_b32 v{vTS+1}, s98, 61")
        e(f"v_writelane_b32 v{vTS+1}, s96, 62")
    e("s_barrier")
    if CU < 16:
        wait_for(("S", 0))
        for op in q_ops() + s_ops(0):
            e(op)
    pre = list(g.lines)
    bodies = []
    snap = None
    for ph in range(2):
        for si in range(NSI if ph == 0 else NVS + 2):
            g.lines[:] = []
            if ph == 1 and si == NVS + 1:
                snap = (list(issued), nxt[0])
            si_body(ph, si)
            bodies.append(list(g.lines))
    dbody = bodies[NSI + NVS]
    assert dbody == bodies[NSI + NVS + 1], "dynamic body not periodic"
    issued[:] = snap[0]
    nxt[0] = snap[1]
    NTOT[0] = (NSI + NVS + 2) * LPS
    advance((NSI + NVS + 1) * LPS + KX - 1)
    assert nxt[0] == NTOT[0]
    g.lines[:] = []
    si_body(1, NVS + 1, KX)
    dtail = list(g.lines)
    g.lines[:] = pre
    uid = [0]
    ool = []

    def put(body):
        u = uid[0]
        uid[0] += 1
        for ln in body:
            ln = ln.replace("@", str(u))
            if ln.startswith("#OOL "):
                ool.append(ln[5:])
            else:
                g.lines.append(ln)

    for ph in range(2):
        NSI_ = NSI if ph == 0 else NVS
        B = bodies[ph * NSI:ph * NSI + NSI_]
        it = 0
        while it < NSI_ and B[it] == B[0]:
            it += 1
        assert it == NSI_ - 1, it
        if a.warm and ph == 1:
            e(f"s_mov_b32 s{sLoop}, s{sCnt1}")
        else:
            e(f"s_mov_b32 s{sLoop}, {it}")
        lab(f"L_loop{ph}")
        put(B[0])
        e(f"s_sub_u32 s{sLoop}, s{sLoop}, 1")
        e(f"s_cmp_lg_u32 s{sLoop}, 0")
        e(f"s_cbranch_scc1 L_loop{ph}")
        put(B[it])
        if ph == 0:
            e(f"s_mov_b64 exec, {X1}")
            e(f"ds_add_u32 v{vOne}, v{vOne} offset:{KD-1}")
            e(f"s_mov_b64 exec, {XA}")
            e(f"ds_read_b32 v{vLg}, v{vLr}")
            e(f"v_add_u32 v{vLr}, 256, v{vLr}")
        if a.stamp:
            e("s_mov_b32 m0, 0")
    lab("L_dloop")
    put(dbody)
    if a.warm:
        e(f"s_cmp_eq_u32 s{sWarm}, 0")
        e("s_cbranch_scc1 L_dloop")
    else:
        e("s_branch L_dloop")
    lab(f"L_dtail")
    e(f"ds_write_b32 v{vOne}, v{vOne} offset:{DT-1}")
    put(dtail)
    flush(True)
    if a.warm:
        e(f"s_cmp_lg_u32 s{sWarm}, 0")
        e("s_cbranch_scc1 L_warmed")
    if a.stamp:
        e("s_memrealtime s[100:101]")
        e("s_getreg_b32 s97, hwreg(HW_REG_XCC_ID)")
        e("s_waitcnt lgkmcnt(0)")
        e(f"v_writelane_b32 v{vTS+1}, s100, 63")
        e(f"v_writelane_b32 v{vTS+1}, s97, 59")
        e(f"s_lshl_b32 s98, s2, 10")
        e(f"s_add_u32 s98, s98, {STAMP_OFF}")
        e(f"v_lshlrev_b32 v{vT0}, 2, v0")
        for i in range(3):
            e(f"buffer_store_dword v{vTS+i}, v{vT0}, s[{sWS}:{sWS+3}], s98 offen offset:{256*i}")
    e("s_endpgm")
    c("ahead of the neighbours: fewer loads in flight")
    g.lines += ool

    lab("L_service")
    nv[0] = 1
    xG16 = alloc(1)
    xSl = alloc(1)
    xZ = alloc(1)
    xCn = alloc(1)
    xT0 = alloc(1)
    xT1 = alloc(1)
    xM = alloc(1)
    xL = alloc(1)
    xN = alloc(1)
    xOut = alloc(1)
    xO = alloc(4, 4)
    xML = alloc(4, 4)
    xF = alloc(8)
    xAd = alloc(17)
    big = alloc(64, 4)
    NV_SERV = nv[0]
    def wave_red(reg, op, rows_only=False):
        if not rows_only:
            for s in range(4):
                e("s_nop 1")
                e(f"{op}_dpp v{reg}, v{reg}, v{reg} row_ror:{8>>s} row_mask:0xf bank_mask:0xf")
        e(f"v_mov_b32 v{xT0}, v{reg}")
        e("s_nop 1")
        e(f"v_permlane32_swap_b32 v{reg}, v{xT0}")
        e("s_nop 1")
        e(f"{op} v{reg}, v{reg}, v{xT0}")
        e(f"v_mov_b32 v{xT0}, v{reg}")
        e("s_nop 1")
        e(f"v_permlane16_swap_b32 v{reg}, v{xT0}")
        e("s_nop 1")
        e(f"{op} v{reg}, v{reg}, v{xT0}")

    sTag, sP, sN, sX = sG0, sIK, sIG, sIS
    sRank, sMode, sBase, sRot = sIT, sIQ, sIC, sLoop
    sMask, sMaskL, sMaskG, sAny = 84, 86, 88, 90
    sSlot, sPart = sFC, sCst
    sGrp = 94
    sFl = 95
    e(f"v_lshlrev_b32 v{xT0}, 2, v0")
    e(f"v_mov_b32 v{xZ}, 0")
    e(f"ds_write_b32 v{xT0}, v{xZ} offset:{CNT}")
    if a.warm:
        c("run once through the stream code with all lanes off: it is in the instruction cache when it is needed")
        for r_ in (vKoff, vSoff, vToff, vL8, vLw, vLr, vSl, vCn, vOne, vTa, vT1):
            e(f"v_mov_b32 v{r_}, 0")
        e(f"v_mov_b32 v{vTk}, 1")
        for r_ in (sPos, sHB, sPos0, sDynH, sG0, sIG, sIK, sIS, sIT, sIQ, sIC, sCst, sDyn, sLgO, sD, sIdx, sM1, sM1 + 1):
            e(f"s_mov_b32 s{r_}, 0")
        e("s_mov_b64 s[84:85], 0")
        e("s_mov_b64 s[86:87], 0")
        for r_ in (sCnt1, sWarm, sLoop, sFC):
            e(f"s_mov_b32 s{r_}, 1")
        if a.stamp:
            e("s_mov_b32 m0, 0")
        e("s_waitcnt lgkmcnt(0)")
        e("s_barrier")
        srd(sK, 6, 805306368)
        srd(sQ, 4, 12288)
        srd(sKS, 10, 6291456)
        srd(sKZ, 12, 6291456)
        srd(sV, 8, 805306368)
        srd(sVS, 14, 2097152)
        srd(sVZ, 16, 2097152)
        srd(sWS, 22, WSB)
        e("s_mov_b64 exec, 0")
        e("s_branch L_loop0")
        lab("L_warmed")
        e("s_mov_b64 exec, -1")
        e(f"v_mov_b32 v{xZ}, 0")
    e(f"v_lshlrev_b32 v{xG16}, 4, v0")
    e(f"v_mov_b32 v{xSl}, v{xG16}")
    e(f"v_lshlrev_b32 v{xAd}, 11, v0")
    e(f"v_mov_b32 v{xCn}, {CNT}")
    e(f"v_mov_b32 v{xN}, {NEG}")
    e(f"v_cndmask_b32 v{xN}, v{xN}, v{xZ}, s[{sM0}:{sM0+1}]")
    e(f"v_and_b32 v{xT0}, 15, v0")
    e(f"v_lshrrev_b32 v{xT1}, 4, v0")
    e(f"v_lshl_add_u32 v{xOut}, v{xT0}, 2, v{xT1}")
    e(f"v_lshlrev_b32 v{xOut}, 1, v{xOut}")
    e(f"s_getreg_b32 s{sX}, hwreg(HW_REG_XCC_ID)")
    e(f"s_and_b32 s{sX}, s{sX}, 15")
    e(f"s_lshl_b32 s{sSlot}, s2, 11")
    e(f"s_add_u32 s{sSlot}, s{sSlot}, {LOC}")
    e(f"s_lshl_b32 s{sGrp}, s{sHead}, {LOG2S+11}")
    e(f"s_add_u32 s{sGrp}, s{sGrp}, {LOC}")
    e(f"s_mov_b32 s{sP}, 0")
    e(f"s_mov_b32 s{sRot}, 0")
    e(f"s_mov_b32 s{sFl}, 0")
    if not a.warm:
        e("s_waitcnt lgkmcnt(0)")
        e("s_barrier")
        srd(sWS, 22, WSB)
    srd(sOUT, 18, 12288)
    lab("L_poll")
    e(f"ds_read_b32 v{xT0}, v{xCn}")
    e("s_waitcnt lgkmcnt(0)")
    e(f"v_readfirstlane_b32 s{sTmp}, v{xT0}")
    e(f"s_cmp_eq_u32 s{sTmp}, 0")
    e("s_cbranch_scc1 L_poll")
    if a.raw:
        for i in range(4):
            e(f"ds_read_b128 v[{big+4*i}:{big+4*i+3}], v{xSl} offset:{SLOT+1024*i}")
        e("s_waitcnt lgkmcnt(0)")
        rowmerge(big, big + 12, big + 13, big + 14, xT0, xT1, xO)
        e(f"v_cndmask_b32 v{xO+3}, v{xML}, v{xML+1}, s[{sM0}:{sM0+1}]")
    else:
        e(f"ds_read_b128 v[{xO}:{xO+3}], v{xSl} offset:{SLOT}")
    e(f"s_cmp_lg_u32 s{sP}, 0")
    e("s_cbranch_scc1 L_guard")
    c("first flush: tag, then the XCC ids of the S workgroups of this head set")
    lab("L_tag")
    e(f"ds_read_b32 v{xT0}, v{xZ} offset:{TGL}")
    e("s_waitcnt lgkmcnt(0)")
    e(f"v_readfirstlane_b32 s{sTag}, v{xT0}")
    e(f"s_cmp_eq_u32 s{sTag}, 0")
    e("s_cbranch_scc1 L_tag")
    e(f"s_lshl_b32 s{sTmp+1}, s{sHead}, {LOG2S+11}")
    e(f"s_lshr_b32 s{sTmp+2}, s{sIdB}, {LOG2S}")
    e(f"s_lshl_b32 s{sTmp+2}, s{sTmp+2}, {LOG2S+11}")
    lab("L_reg")
    e(f"buffer_load_dwordx2 v[{xML}:{xML+1}], v{xAd}, s[{sWS}:{sWS+3}], s{sTmp+1} offen offset:{FIN+1536}{SC}")
    if a.lastb:
        c("the publishers of the logits this workgroup may need in the last head phase")
        e(f"buffer_load_dwordx2 v[{xML+2}:{xML+3}], v{xAd}, s[{sWS}:{sWS+3}], s{sTmp+2} offen offset:{FIN+1536}{SC}")
    e("s_waitcnt vmcnt(0)")
    e(f"v_cmp_ne_u32 vcc, s{sTag}, v{xML+1}")
    e("s_cmp_lg_u64 vcc, 0")
    e("s_cbranch_scc1 L_reg")
    if a.lastb:
        e(f"v_cmp_ne_u32 vcc, s{sTag}, v{xML+3}")
        e("s_cmp_lg_u64 vcc, 0")
        e("s_cbranch_scc1 L_reg")
    e(f"ds_write_b32 v{xZ}, v{xML+1} offset:{RK}")
    e(f"s_mov_b32 s{sFl}, s{sTag}")
    e(f"v_cmp_eq_u32 s[{sMaskL}:{sMaskL+1}], s{sX}, v{xML}")
    e(f"v_lshlrev_b32 v{xM}, v{xML}, 1")
    wave_red(xM, "v_or_b32")
    e(f"s_bcnt1_i32_b64 s{sN}, s[{sMaskL}:{sMaskL+1}]")
    e(f"s_bfm_b64 s[{sMask}:{sMask+1}], s{sJ}, 0")
    e(f"s_and_b64 s[{sMask}:{sMask+1}], s[{sMask}:{sMask+1}], s[{sMaskL}:{sMaskL+1}]")
    e(f"s_bcnt1_i32_b64 s{sRank}, s[{sMask}:{sMask+1}]")
    e(f"v_readfirstlane_b32 s{sMaskG}, v{xM}")
    e(f"s_mov_b32 s{sMaskG+1}, 0")
    e("s_branch L_dep")
    lab("L_guard")
    c("the previous round of this group must have been read by its merger")
    e(f"v_mov_b32 v{xML+1}, s{sTag}")
    e(f"s_mov_b64 exec, s[{sMaskL}:{sMaskL+1}]")
    e(f"buffer_load_dwordx2 v[{xML}:{xML+1}], v{xAd}, s[{sWS}:{sWS+3}], s{sGrp} offen offset:1024{LLF}")
    e("s_mov_b64 exec, -1")
    e("s_waitcnt vmcnt(0)")
    e(f"v_cmp_eq_u32 vcc, s{sFl}, v{xML+1}")
    e("s_cmp_eq_u64 vcc, 0")
    e("s_cbranch_scc1 L_guard")
    lab("L_dep")
    e(f"s_add_u32 s{sP}, s{sP}, 1")
    e(f"s_add_u32 s{sFl}, s{sFl}, 1")
    e("s_waitcnt lgkmcnt(0)")
    e(f"buffer_store_dwordx4 v[{xO}:{xO+3}], v{xG16}, s[{sWS}:{sWS+3}], s{sSlot} offen")
    e(f"v_mov_b32 v{xT1}, s{sFl}")
    e("s_mov_b64 exec, 1")
    e("s_waitcnt vmcnt(0)")
    e(f"buffer_store_dword v{xT1}, v{xZ}, s[{sWS}:{sWS+3}], s{sSlot} offen offset:1024")
    e("s_mov_b64 exec, -1")
    e(f"s_cmp_lg_u32 s{sRot}, s{sRank}")
    e("s_cbranch_scc1 L_next")
    c("merger of this round: wait for all members")
    lab("L_all")
    e(f"v_mov_b32 v{xML}, s{sFl}")
    e(f"s_mov_b64 exec, s[{sMaskL}:{sMaskL+1}]")
    e(f"buffer_load_dword v{xML}, v{xAd}, s[{sWS}:{sWS+3}], s{sGrp} offen offset:1024{LLF}")
    e("s_mov_b64 exec, -1")
    e("s_waitcnt vmcnt(0)")
    e(f"v_cmp_ne_u32 vcc, s{sFl}, v{xML}")
    e("s_cmp_lg_u64 vcc, 0")
    e("s_cbranch_scc1 L_all")
    e(f"s_mov_b32 s{sMode}, 0")
    e(f"s_mov_b32 s{sBase}, s{sGrp}")
    e(f"s_mov_b64 s[{sMask}:{sMask+1}], s[{sMaskL}:{sMaskL+1}]")
    lab("L_merge")
    e(f"v_mov_b32 v{xM}, {NEG}")
    e(f"v_mov_b32 v{xL}, 0")
    for k in range(3):
        e(f"v_mov_b32 v{xO+k}, 0")
    lab("L_chunk")
    for i in range(8):
        for k in range(3):
            e(f"v_mov_b32 v{big+4*i+k}, 0")
        e(f"v_mov_b32 v{big+4*i+3}, v{xN}")
    for i in range(8):
        e(f"s_ff1_i32_b64 s{sTmp}, s[{sMask}:{sMask+1}]")
        e(f"s_bitset0_b64 s[{sMask}:{sMask+1}], s{sTmp}")
        e(f"s_lshl_b32 s{sTmp+1}, s{sTmp}, 11")
        e(f"s_add_u32 s{sTmp+1}, s{sTmp+1}, s{sBase}")
        e(f"s_cmp_ge_i32 s{sTmp}, 0")
        e(f"s_cselect_b64 exec, -1, 0")
        e(f"buffer_load_dwordx4 v[{big+4*i}:{big+4*i+3}], v{xG16}, s[{sWS}:{sWS+3}], s{sTmp+1} offen{SC}")
    e("s_mov_b64 exec, -1")
    e("s_waitcnt vmcnt(0)")
    e(f"v_max3_f32 v{xT0}, v{big+3}, v{big+7}, v{big+11}")
    e(f"v_max3_f32 v{xT0}, v{xT0}, v{big+15}, v{big+19}")
    e(f"v_max3_f32 v{xT0}, v{xT0}, v{big+23}, v{big+27}")
    e(f"v_max_f32 v{xT0}, v{xT0}, v{big+31}")
    e("s_nop 1")
    QM = "quad_perm:[0,0,2,2] row_mask:0xf bank_mask:0xf"
    QL = "quad_perm:[1,1,3,3] row_mask:0xf bank_mask:0xf"
    e(f"v_max_f32_dpp v{xT1}, v{xT0}, v{xM} {QM}")
    e(f"v_sub_f32 v{xT0}, v{xM}, v{xT1}")
    e(f"v_exp_f32 v{xT0}, v{xT0}")
    for i in range(8):
        e(f"v_sub_f32_dpp v{xF+i}, v{big+4*i+3}, v{xT1} {QM}")
    for i in range(8):
        e(f"v_exp_f32 v{xF+i}, v{xF+i}")
    e(f"v_mov_b32 v{xM}, v{xT1}")
    e(f"v_mul_f32 v{xL}, v{xL}, v{xT0}")
    for k in range(3):
        e(f"v_mul_f32 v{xO+k}, v{xO+k}, v{xT0}")
    for i in range(8):
        for k in range(3):
            e(f"v_fmac_f32 v{xO+k}, v{xF+i}, v{big+4*i+k}")
        e(f"v_fmac_f32 v{xL}, v{xF+i}, v{big+4*i+3}")
    e(f"s_cmp_lg_u64 s[{sMask}:{sMask+1}], 0")
    e("s_cbranch_scc1 L_chunk")
    e(f"s_cmp_lg_u32 s{sMode}, 0")
    e("s_cbranch_scc1 L_fin")
    c("release the slots, publish the record, count it")
    e(f"v_cndmask_b32 v{xO+3}, v{xM}, v{xL}, s[{sM0}:{sM0+1}]")
    e(f"v_mov_b32 v{xT0}, s{sFl}")
    e(f"v_mov_b32 v{xT1}, s{sN}")
    e(f"s_lshl_b32 s{sBase}, s{sHead}, 15")
    e(f"s_add_u32 s{sBase}, s{sBase}, {REC}")
    e(f"s_lshl_b32 s{sTmp}, s{sX}, 11")
    e(f"s_add_u32 s{sTmp}, s{sTmp}, s{sBase}")
    e(f"buffer_store_dwordx4 v[{xO}:{xO+3}], v{xG16}, s[{sWS}:{sWS+3}], s{sTmp} offen{SC}")
    e("s_mov_b64 exec, 1")
    e(f"buffer_store_dword v{xT0}, v{xZ}, s[{sWS}:{sWS+3}], s{sSlot} offen offset:1028")
    e(f"s_lshl_b32 s{sTmp}, s{sHead}, 8")
    e(f"s_add_u32 s{sTmp}, s{sTmp}, {PCT + 32*256}")
    e("s_waitcnt vmcnt(0)")
    e(f"buffer_atomic_add v{xT1}, v{xZ}, s[{sWS}:{sWS+3}], s{sTmp} offen{SC}")
    e("s_waitcnt vmcnt(0)")
    e("s_mov_b64 exec, -1")
    e(f"v_readfirstlane_b32 s{sTmp}, v{xT1}")
    e(f"s_add_u32 s{sTmp}, s{sTmp}, s{sN}")
    e(f"s_cmp_lg_u32 s{sTmp}, {S}")
    e("s_cbranch_scc1 L_next")
    e(f"s_mov_b32 s{sMode}, 1")
    e(f"s_mov_b64 s[{sMask}:{sMask+1}], s[{sMaskG}:{sMaskG+1}]")
    e("s_branch L_merge")
    lab("L_fin")
    e("s_nop 1")
    e(f"v_mov_b32_dpp v{xT0}, v{xL} {QL}")
    e(f"v_rcp_f32 v{xT0}, v{xT0}")
    e(f"s_mul_i32 s{sTmp}, s{sHead}, 384")
    for k in range(3):
        e(f"v_mul_f32 v{xO+k}, v{xO+k}, v{xT0}")
    for k in range(3):
        e(f"v_cvt_pk_bf16_f32 v{xO+k}, v{xO+k}, v{xO+k}")
    for k in range(3):
        e(f"buffer_store_short v{xO+k}, v{xOut}, s[{sOUT}:{sOUT+3}], s{sTmp} offen offset:{128*k}")
    lab("L_next")
    e(f"v_add_u32 v{xSl}, {SLB}, v{xSl}")
    e(f"v_add_u32 v{xCn}, 4, v{xCn}")
    e(f"s_add_u32 s{sHead}, s{sHead}, {HC}")
    e(f"s_add_u32 s{sRot}, s{sRot}, 1")
    e(f"s_cmp_eq_u32 s{sRot}, s{sN}")
    e(f"s_cselect_b32 s{sRot}, 0, s{sRot}")
    e(f"s_cmp_lt_u32 s{sP}, {NP-1}")
    e("s_cbranch_scc1 L_poll")

    c("last head phase: part-combiner (part = j>>4) iff (j & 15) == (5*part + 3*sp + 1) & 15")
    e(f"s_and_b32 s{sJ}, s{sIdB}, {S-1}")
    e(f"s_lshr_b32 s{sPart}, s{sJ}, 4")
    e(f"s_lshr_b32 s{sTmp+1}, s{sIdB}, {LOG2S}")
    e(f"s_add_u32 s{sHead}, s{sTmp+1}, {(NP-1)*HC}")
    e(f"s_mul_i32 s{sTmp}, s{sPart}, 5")
    e(f"s_mul_i32 s{sTmp+2}, s{sTmp+1}, 3")
    e(f"s_add_u32 s{sTmp}, s{sTmp}, s{sTmp+2}")
    e(f"s_add_u32 s{sTmp}, s{sTmp}, 1")
    e(f"s_xor_b32 s{sTmp}, s{sTmp}, s{sJ}")
    e(f"s_and_b32 s{sTmp}, s{sTmp}, 15")
    e("s_cbranch_scc1 L_end")
    e(f"s_lshl_b32 s{sBase}, s{sTmp+1}, {LOG2S+11}")
    e(f"v_and_b32 v{xT0}, 15, v0")
    e(f"v_lshrrev_b32 v{xT1}, 4, v0")
    e(f"v_lshlrev_b32 v{xAd}, 11, v{xT1}")
    e(f"v_lshl_add_u32 v{xAd+16}, v{xT0}, 13, v{xAd}")
    e(f"v_lshl_add_u32 v{xAd}, v{xT0}, 4, v{xAd}")
    e(f"s_lshl_b32 s{sTmp}, s{sPart}, 8")
    e(f"v_add_u32 v{xAd}, s{sTmp}, v{xAd}")
    for i in range(1, 16):
        e(f"v_add_u32 v{xAd+i}, {8192*i}, v{xAd}")
    for i in range(16):
        e(f"v_mov_b32 v{big+4*i+3}, 0")
    e(f"v_mov_b32 v{xML+3}, 0")
    e(f"v_lshlrev_b32 v{xOut}, 3, v{xT0}")
    e(f"s_lshl_b32 s{sTmp}, s{sPart}, 1")
    e(f"s_mul_i32 s{sPart}, s{sHead}, 384")
    e(f"s_add_u32 s{sPart}, s{sPart}, s{sTmp}")
    lab("L_dt")
    e(f"ds_read_b32 v{xT0}, v{xZ} offset:{DT}")
    e("s_waitcnt lgkmcnt(0)")
    e(f"v_readfirstlane_b32 s{sTmp}, v{xT0}")
    e(f"s_cmp_eq_u32 s{sTmp}, 0")
    e("s_cbranch_scc1 L_dt")
    pairs = list(range(24, 52, 2)) + [4, 6, 8]
    regs = [big + 4 * i for i in range(16)] + [xML]
    lab("L_pp")
    for i in range(17):
        e(f"v_cmp_ne_u32 s[{pairs[i]}:{pairs[i]+1}], s{sTag}, v{regs[i]+3}")
    e(f"s_or_b64 s[{sAny}:{sAny+1}], s[{pairs[0]}:{pairs[0]+1}], s[{pairs[1]}:{pairs[1]+1}]")
    for i in range(2, 17):
        e(f"s_or_b64 s[{sAny}:{sAny+1}], s[{sAny}:{sAny+1}], s[{pairs[i]}:{pairs[i]+1}]")
    e("s_cbranch_scc0 L_pd")
    for i in [16] + list(range(16)):
        e(f"s_mov_b64 exec, s[{pairs[i]}:{pairs[i]+1}]")
        e(f"buffer_load_dwordx4 v[{regs[i]}:{regs[i]+3}], v{xAd+i}, s[{sWS}:{sWS+3}], s{sBase} offen offset:{FIN + (1024 if i == 16 else 0)}{SC}")
    e("s_mov_b64 exec, -1")
    e("s_waitcnt vmcnt(0)")
    e("s_branch L_pp")
    lab("L_pd")

    e(f"v_mov_b32 v{xM}, v{xML}")
    wave_red(xM, "v_max_f32")
    e(f"v_sub_f32 v{xT1}, v{xML}, v{xM}")
    e(f"v_exp_f32 v{xT1}, v{xT1}")
    for k in range(3):
        e(f"v_mov_b32 v{xO+k}, 0")
    e(f"v_mul_f32 v{xL}, v{xT1}, v{xML+1}")
    for i in range(16):
        for k in range(3):
            e(f"v_fmac_f32_dpp v{xO+k}, v{xT1}, v{big+4*i+k} row_newbcast:{i} row_mask:0xf bank_mask:0xf")
    wave_red(xL, "v_add_f32")
    e(f"v_rcp_f32 v{xL}, v{xL}")
    c("sum the 4 rows")
    for k in range(3):
        e(f"v_mov_b32 v{xF+k}, v{xO+k}")
    e("s_nop 1")
    for k in range(3):
        e(f"v_permlane32_swap_b32 v{xO+k}, v{xF+k}")
    e("s_nop 1")
    for k in range(3):
        e(f"v_add_f32 v{xO+k}, v{xO+k}, v{xF+k}")
    for k in range(3):
        e(f"v_mov_b32 v{xF+k}, v{xO+k}")
    e("s_nop 1")
    for k in range(3):
        e(f"v_permlane16_swap_b32 v{xO+k}, v{xF+k}")
    e("s_nop 1")
    for k in range(3):
        e(f"v_add_f32 v{xO+k}, v{xO+k}, v{xF+k}")
    for k in range(3):
        e(f"v_mul_f32 v{xO+k}, v{xO+k}, v{xL}")
    for k in range(3):
        e(f"v_cvt_pk_bf16_f32 v{xO+k}, v{xO+k}, v{xO+k}")
    e("s_mov_b64 exec, 0xffff")
    for k in range(3):
        e(f"buffer_store_short v{xO+k}, v{xOut}, s[{sOUT}:{sOUT+3}], s{sPart} offen offset:{128*k}")
    if a.stamp:
        e("s_memrealtime s[96:97]")
        e("s_waitcnt vmcnt(0)")
        e("s_memrealtime s[98:99]")
        e(f"s_lshl_b32 s{sTmp}, s2, 10")
        e(f"s_add_u32 s{sTmp}, s{sTmp}, {STAMP_OFF}")
        e("s_waitcnt lgkmcnt(0)")
        e(f"v_mov_b32 v{xO}, s96")
        e(f"v_mov_b32 v{xO+1}, s98")
        e(f"v_mov_b32 v{xO+2}, 8")
        e(f"v_mov_b32 v{xO+3}, 0x12345678")
        e(f"buffer_store_dwordx4 v[{xO}:{xO+3}], v{xZ}, s[{sWS}:{sWS+3}], s{sTmp} offen offset:768")
    lab("L_end")
    e("s_endpgm")

    lab("L_ticket")
    y4, yZ, yT, y8, yA = 1, 2, 3, 4, 5
    yP = 8
    sN = sIG
    e(f"v_lshlrev_b32 v{y4}, 2, v0")
    e(f"v_mov_b32 v{yZ}, 0")
    e(f"v_lshlrev_b32 v{y8}, 4, v0")
    for i in range(4):
        e(f"v_mov_b32 v{yP+i}, -1")
    for i in range(3):
        e(f"ds_write_b128 v{y8}, v[{yP}:{yP+3}] offset:{TK+1024*i}")
    e(f"s_memrealtime s[{sTmp}:{sTmp+1}]")
    e("s_waitcnt lgkmcnt(0)")
    e("s_barrier")
    srd(sWS, 22, WSB)
    srd(sDBG, 20, 256)
    e(f"s_max_u32 s{sTag}, s{sTmp}, 1")
    e("s_cmp_lg_u32 s2, 0")
    e("s_cbranch_scc1 L_kd")
    c("workgroup 0: zero all counters, then publish the launch tag")
    e(f"v_lshlrev_b32 v{yA}, 8, v0")
    for off in (PCT,):
        e(f"s_mov_b32 s{sTmp}, {off}")
        e(f"buffer_store_dword v{yZ}, v{yA}, s[{sWS}:{sWS+3}], s{sTmp} offen{SC}")
    e(f"v_mov_b32 v{yT}, s{sTag}")
    e("s_mov_b64 exec, 1")
    e("s_waitcnt vmcnt(0)")
    e(f"buffer_store_dword v{yT}, v{yZ}, s[{sDBG}:{sDBG+3}], 0 offen{SC}")
    e("s_mov_b64 exec, -1")
    lab("L_kd")
    e(f"ds_read_b32 v{yT}, v{yZ} offset:{KD}")
    e("s_waitcnt lgkmcnt(0)")
    e(f"v_readfirstlane_b32 s{sTmp}, v{yT}")
    e(f"s_cmp_eq_u32 s{sTmp}, 0")
    e("s_cbranch_scc1 L_kd")
    NL4 = (TS + 3) // 4
    for i in range(NL4):
        e(f"ds_read_b128 v[{yP+4*i}:{yP+4*i+3}], v{y8} offset:{LG + NVS*256 + 1024*i}")
    e(f"s_lshl_b32 s{sTmp}, s2, 11")
    e(f"s_add_u32 s{sTmp}, s{sTmp}, {LGW}")
    e("s_waitcnt lgkmcnt(0)")
    for i in range(NL4):
        rem = TS - 4 * i
        if rem < 4:
            e(f"s_bfm_b64 exec, {16*rem}, 0")
        e(f"buffer_store_dwordx4 v[{yP+4*i}:{yP+4*i+3}], v{y8}, s[{sWS}:{sWS+3}], s{sTmp} offen offset:{1024*i}{SC}")
    e("s_mov_b64 exec, -1")
    lab("L_tg")
    e(f"buffer_load_dword v{yT}, v{yZ}, s[{sDBG}:{sDBG+3}], 0 offen{SC}")
    e("s_waitcnt vmcnt(0)")
    e(f"v_readfirstlane_b32 s{sTag}, v{yT}")
    e(f"s_cmp_eq_u32 s{sTag}, 0")
    e("s_cbranch_scc1 L_tg")
    e(f"ds_write_b32 v{yZ}, v{yT} offset:{TGL}")
    c("publish the XCC id; it also tells that the logits above have landed (vmcnt(0) in L_tg)")
    e(f"s_getreg_b32 s{sTmp+1}, hwreg(HW_REG_XCC_ID)")
    e(f"s_and_b32 s{sTmp+1}, s{sTmp+1}, 15")
    e(f"v_mov_b32 v{yP+8}, s{sTmp+1}")
    e(f"v_mov_b32 v{yP+8+1}, s{sTag}")
    e(f"s_lshl_b32 s{sTmp}, s2, 11")
    e("s_mov_b64 exec, 1")
    e(f"buffer_store_dwordx2 v[{yP+8}:{yP+8+1}], v{yZ}, s[{sWS}:{sWS+3}], s{sTmp} offen offset:{FIN+1536}{SC}")
    e(f"s_lshr_b32 s{sTmp+2}, s{sIdB}, {LPSZ}")
    e(f"s_lshl_b32 s{sTmp+2}, s{sTmp+2}, 8")
    e(f"s_add_u32 s{sTmp+2}, s{sTmp+2}, {PCT}")
    NC = len(CH)
    assert NC <= 7 and not OWN
    r0tbl = sum(sum(CH[:i]) << (4 * i) for i in range(NC + 1))
    ntbl = sum(n << (4 * i) for i, n in enumerate(CH + [1]))
    sLast, sNA = sIK, sIS
    e("s_mov_b64 exec, -1")
    e(f"s_mov_b32 s{sN}, 1")
    e(f"s_mov_b32 s{sLast}, 0")
    e(f"s_mov_b32 s{sNA}, 1")
    e(f"v_add_u32 v{yA}, {TK+4}, v{y4}")
    e(f"v_lshlrev_b32 v{y8}, {LPSZ}, v0")
    lab("L_rq0")
    e("s_mov_b64 exec, 1")
    lab("L_rq")
    e(f"ds_read_b32 v{yT}, v{yZ} offset:{RQ}")
    e("s_waitcnt lgkmcnt(0)")
    e(f"v_readfirstlane_b32 s{sTmp}, v{yT}")
    e(f"s_cmp_lt_u32 s{sTmp}, s{sN}")
    e("s_cbranch_scc1 L_rq")
    if a.pre:
        c("close to the end: look first, a read does not disturb the stream")
        e(f"s_cmp_lt_u32 s{sLast}, {NC*PS - a.pre}")
        e("s_cbranch_scc1 L_at")
        e(f"buffer_load_dword v{yT}, v{yZ}, s[{sWS}:{sWS+3}], s{sTmp+2} offen sc0 sc1")
        e("s_waitcnt vmcnt(0)")
        e(f"v_readfirstlane_b32 s{sLast}, v{yT}")
        e(f"s_cmp_ge_u32 s{sLast}, {NC*PS}")
        e("s_cbranch_scc1 L_have")
        lab("L_at")
    e(f"v_mov_b32 v{yT}, 1")
    if a.stamp:
        e("s_memrealtime s[96:97]")
        e("s_waitcnt lgkmcnt(0)")
    e(f"buffer_atomic_add v{yT}, v{yZ}, s[{sWS}:{sWS+3}], s{sTmp+2} offen sc0 sc1")
    e("s_waitcnt vmcnt(0)")
    if a.stamp:
        e("s_memrealtime s[98:99]")
        e("s_waitcnt lgkmcnt(0)")
        e("s_sub_u32 s98, s98, s96")
        e(f"s_min_u32 s97, s{sNA}, 31")
        e("s_mov_b32 m0, s97")
        e(f"v_writelane_b32 v{yP+10}, s98, m0")
        e(f"s_add_u32 s{sNA}, s{sNA}, 1")
    e(f"v_readfirstlane_b32 s{sLast}, v{yT}")
    lab("L_have")
    c("ticket class -> first round, number of items")
    e(f"s_lshr_b32 s{sTmp}, s{sLast}, {LPSZ}")
    e(f"s_min_u32 s{sTmp}, s{sTmp}, {NC}")
    e(f"s_lshl_b32 s{sTmp}, s{sTmp}, 2")
    e(f"s_lshr_b32 s{sTmp+1}, 0x{r0tbl:x}, s{sTmp}")
    e(f"s_lshr_b32 s{sTmp}, 0x{ntbl:x}, s{sTmp}")
    e(f"s_and_b32 s{sTmp+1}, s{sTmp+1}, 15")
    e(f"s_and_b32 s{sTmp}, s{sTmp}, 15")
    e(f"s_lshl_b32 s{sTmp+1}, s{sTmp+1}, {LPSZ}")
    e(f"s_and_b32 s{sTmp+3}, s{sLast}, {PS-1}")
    e(f"s_add_u32 s{sTmp+1}, s{sTmp+1}, s{sTmp+3}")
    e(f"s_bfm_b64 exec, s{sTmp}, 0")
    e(f"v_add_u32 v{yT}, s{sTmp+1}, v{y8}")
    e(f"ds_write_b32 v{yA}, v{yT}")
    e("s_mov_b64 exec, -1")
    e(f"s_add_u32 s{sN}, s{sN}, s{sTmp}")
    e(f"s_lshl_b32 s{sTmp}, s{sTmp}, 2")
    e(f"v_add_u32 v{yA}, s{sTmp}, v{yA}")
    e(f"s_cmp_lt_u32 s{sLast}, {NC*PS}")
    e("s_cbranch_scc1 L_rq0")
    if a.stamp:
        e(f"v_writelane_b32 v{yP+10}, s{sNA}, 0")
        e("s_mov_b64 exec, 0xffffffff")
        e(f"s_lshl_b32 s98, s2, 10")
        e(f"s_add_u32 s98, s98, {STAMP_OFF}")
        e(f"buffer_store_dword v{yP+10}, v{y4}, s[{sWS}:{sWS+3}], s98 offen offset:896")
    e("s_endpgm")
    NV_TK = yP + 11

    if a.fc:
        sOwn, sPrev, sCur, sCn, sSum = sIG, sIK, sIS, sIT, sIQ
        lab("L_ctl")
        c("the workgroups of one XCD see each other's progress in its L2 (second half of d_debug, zero at launch);")
        c("performance only: nobody ever waits for these words")
        e("v_lshlrev_b32 v1, 2, v0")
        e("v_mov_b32 v2, 0")
        e(f"ds_write_b32 v1, v2 offset:{PRG}")
        e(f"s_and_b32 s{sOwn}, s2, 31")
        e(f"s_lshl_b32 s{sOwn}, s{sOwn}, 2")
        e(f"s_mov_b32 s{sPrev}, 1")
        e("s_waitcnt lgkmcnt(0)")
        e("s_barrier")
        srd(sDBG, 20, 256)
        if a.pf:
            c("touch this workgroup's share of the scales once, early: they are served from cache later (lane = item)")
            assert CU == 4 and a.lastb
            srd(sKS, 10, 6291456)
            srd(sKZ, 12, 6291456)
            srd(sVS, 14, 2097152)
            srd(sVZ, 16, 2097152)
            e(f"v_cmp_le_u32 vcc, {NSI-NSHP}, v0")
            e(f"v_cmp_gt_u32 s[{sTmp}:{sTmp+1}], {NSI-TS}, v0")
            e(f"s_and_b64 vcc, vcc, s[{sTmp}:{sTmp+1}]")
            e(f"v_mov_b32 v7, s2")
            e(f"v_mov_b32 v8, s{sIdB}")
            e(f"v_cndmask_b32 v7, v7, v8, vcc")
            e(f"v_lshrrev_b32 v8, 6, v7")
            e(f"v_lshrrev_b32 v9, 3, v0")
            e(f"v_lshl_add_u32 v8, v9, 2, v8")
            e(f"v_and_b32 v9, 7, v0")
            e(f"v_lshl_add_u32 v8, v8, 3, v9")
            e(f"v_and_b32 v9, 3, v7")
            e(f"v_lshl_add_u32 v8, v8, 2, v9")
            e(f"v_bfe_u32 v9, v7, 2, 4")
            e(f"v_lshl_add_u32 v8, v8, 4, v9")
            e(f"v_mul_u32_u24 v9, 384, v8")
            e(f"v_lshlrev_b32 v8, 7, v8")
            i = 10
            G = a.pf
            for sr in (sKS, sKZ):
                for o in range(0, 384, G):
                    e(f"buffer_load_dword v{i}, v9, s[{sr}:{sr+3}], 0 offen offset:{o}{PFF}")
                    i += 1
            for sr in (sVS, sVZ):
                for o in range(0, 128, G):
                    e(f"buffer_load_dword v{i}, v8, s[{sr}:{sr+3}], 0 offen offset:{o}{PFF}")
                    i += 1
        lab("L_c")
        e(f"ds_read_b32 v3, v2 offset:{PRG}")
        e(f"ds_read_b32 v4, v2 offset:{DT}")
        e("s_mov_b64 exec, 1")
        e("s_waitcnt lgkmcnt(0)")
        e("v_add_u32 v3, 1, v3")
        e(f"buffer_store_dword v3, v2, s[{sDBG}:{sDBG+3}], s{sOwn} offen offset:128")
        e("s_mov_b64 exec, 0xffffffff")
        e(f"buffer_load_dword v5, v1, s[{sDBG}:{sDBG+3}], 0 offen offset:128 sc1")
        e(f"v_readfirstlane_b32 s{sCur}, v3")
        e(f"v_readfirstlane_b32 s{sTmp+1}, v4")
        e(f"s_add_u32 s{sTmp}, s{sPrev}, s{sCur}")
        e(f"s_mov_b32 s{sPrev}, s{sCur}")
        if a.th:
            e(f"s_sub_i32 s{sTmp}, s{sTmp}, {a.th}")
        e("s_waitcnt vmcnt(0)")
        e("v_cmp_ne_u32 vcc, 0, v5")
        for s_ in range(4):
            if s_:
                e("s_nop 1")
            e(f"v_add_u32_dpp v5, v5, v5 row_ror:{8>>s_} row_mask:0xf bank_mask:0xf")
        e(f"s_bcnt1_i32_b64 s{sCn}, vcc")
        e(f"s_mul_i32 s{sTmp}, s{sTmp}, s{sCn}")
        e(f"v_readlane_b32 s{sSum}, v5, 0")
        e(f"v_readlane_b32 s{sCn}, v5, 16")
        e(f"s_add_u32 s{sSum}, s{sSum}, s{sCn}")
        e(f"s_lshl_b32 s{sSum}, s{sSum}, 1")
        e(f"s_cmp_gt_i32 s{sTmp}, s{sSum}")
        e(f"s_cselect_b32 s{sTmp}, 1, 0")
        e(f"v_mov_b32 v6, s{sTmp}")
        e(f"ds_write_b32 v2, v6 offset:{LVL}")
        e(f"s_cmp_eq_u32 s{sTmp+1}, 0")
        e("s_cbranch_scc1 L_c")
        e("s_endpgm")

    NVGPR = max(NV_STREAM, NV_SERV, NV_TK)
    assert NVGPR <= 256
    out += g.lines
    out.append('.section .rodata,"a"')
    accoff = (NVGPR + 3) // 4 * 4
    out.append(".p2align 6")
    out.append(f".amdhsa_kernel {KN}")
    out.append(f"  .amdhsa_next_free_vgpr {NVGPR}")
    out.append(f"  .amdhsa_next_free_sgpr {NSGPR}")
    out.append(f"  .amdhsa_accum_offset {accoff}")
    out.append("  .amdhsa_float_denorm_mode_32 3")
    out.append("  .amdhsa_group_segment_fixed_size 0")
    out.append("  .amdhsa_kernarg_size 80")
    out.append("  .amdhsa_user_sgpr_count 2")
    out.append("  .amdhsa_user_sgpr_kernarg_segment_ptr 1")
    out.append("  .amdhsa_system_sgpr_workgroup_id_x 1")
    out.append(".end_amdhsa_kernel")
    sys.stderr.write(f"NVGPR={NVGPR} ({NV_STREAM}/{NV_SERV}) R={R} RS={RS} TS={TS} lds={lds_bytes}\n")
    return "\n".join(out) + "\n"


if __name__ == "__main__":
    p = argparse.ArgumentParser()
    p.add_argument("--ring", type=int, default=24)
    p.add_argument("--fc", type=int, default=3)
    p.add_argument("--pf", type=int, default=0)
    p.add_argument("--pff", default="")
    p.add_argument("--fcp", type=int, default=3)
    p.add_argument("--fcr", type=int, default=12)
    p.add_argument("--fcd", type=int, default=1)
    p.add_argument("--th", type=int, default=0)
    p.add_argument("--ts", type=int, default=4)
    p.add_argument("--ringv", type=int, default=0)
    p.add_argument("--trg", type=int, default=-20)
    p.add_argument("--rota", type=int, default=0)
    p.add_argument("--prio", type=int, default=1)
    p.add_argument("--lds", type=int, default=98304)
    p.add_argument("--stamp", type=int, default=0)
    p.add_argument("--map", type=int, default=3)
    p.add_argument("--raw", type=int, default=0)
    p.add_argument("--pace", default="")
    p.add_argument("--pu", type=int, default=1)
    p.add_argument("--burst", type=int, default=16)
    p.add_argument("--cu", type=int, default=4)
    p.add_argument("--warm", type=int, default=0)
    p.add_argument("--lastb", type=int, default=2)
    p.add_argument("--chunks", default="")
    p.add_argument("--pre", type=int, default=0)
    p.add_argument("--ps", type=int, default=64)
    p.add_argument("--own", type=int, default=0)
    p.add_argument("--dbg", type=int, default=0)
    p.add_argument("--llf", default="sc0+sc1")
    p.add_argument("-o", default=None)
    a = p.parse_args()
    txt = build(a)
    if a.o:
        open(a.o, "w").write(txt)
    else:
        sys.stdout.write(txt)
```
